```python
import torch

def _softmax(x, axis=-1):
    return torch.softmax(x, dim=axis)
def _gelu(x):
    return torch.nn.functional.gelu(x, approximate="tanh")
def _silu(x):
    return torch.nn.functional.silu(x)
def _sigmoid(x):
    return torch.sigmoid(x)
def _layernorm(x, axis=-1, eps=1e-5):
    m = x.mean(dim=axis, keepdim=True)
    v = x.var(dim=axis, keepdim=True, unbiased=False)
    return (x - m) / torch.sqrt(v + eps)
def _scatter_add(tgt, idx, src, axis=0):
    return tgt.clone().index_add_(axis, idx, src)
def _segment_sum(src, seg, n):
    out = torch.zeros((n,) + src.shape[1:], dtype=src.dtype)
    return out.index_add_(0, seg, src)
def _pad(x, pw):
    flat = tuple(v for pair in reversed(pw) for v in pair)
    return torch.nn.functional.pad(x, flat)

kernel_name = 'parallel_sum__ssm_conv_h3__glu_gated_swiglu__prompt'

def setup_inputs():

    _w = (lambda a: (lambda t: t.to(torch.bfloat16) if t.is_floating_point() else t)(torch.as_tensor(a)))
    def _A_setup():
        B, S, D = 1, 2048, 576
        ks = 4
        return {
            "q": _w((lambda *s: torch.randn(*s, dtype=torch.bfloat16) * 0.05)(B, S, D)),
            "k": _w((lambda *s: torch.randn(*s, dtype=torch.bfloat16) * 0.2)(B, S, D)),
            "v": _w((lambda *s: torch.randn(*s, dtype=torch.bfloat16) * 0.2)(B, S, D)),
            "shift_k": _w((lambda *s: torch.randn(*s, dtype=torch.bfloat16) * 0.2)(D, ks) * 0.5),
            "ssm_k": _w((lambda *s: torch.randn(*s, dtype=torch.bfloat16) * 0.4)(D, S) * (1.0 / S ** 0.5)),
            "ssm_D": _w((lambda *s: torch.randn(*s, dtype=torch.bfloat16) * 0.2)(D)),
        }
    _A_in = _A_setup()

    def _B_setup():
        B, S, D, F = 1, 2048, 576, 4608
        return {
            "x": _w((lambda *s: torch.randn(*s, dtype=torch.bfloat16) * 0.05)(B, S, D)),
            "w1": _w((lambda *s: torch.randn(*s, dtype=torch.bfloat16) * 0.2)(D, F) * (2.0 / D) ** 0.5),
            "w3": _w((lambda *s: torch.randn(*s, dtype=torch.bfloat16) * 0.2)(D, F) * (2.0 / D) ** 0.5),
            "w2": _w((lambda *s: torch.randn(*s, dtype=torch.bfloat16) * 0.2)(F, D) * (2.0 / F) ** 0.5),
        }
    _B_in = _B_setup()

    return {
        "A_q": _A_in["q"],
        "A_k": _A_in["k"],
        "A_v": _A_in["v"],
        "A_shift_k": _A_in["shift_k"],
        "A_ssm_k": _A_in["ssm_k"],
        "A_ssm_D": _A_in["ssm_D"],
        "B_x": _B_in["x"],
        "B_w1": _B_in["w1"],
        "B_w3": _B_in["w3"],
        "B_w2": _B_in["w2"],
    }

def reference(A_q, A_k, A_v, A_shift_k, A_ssm_k, A_ssm_D, B_x, B_w1, B_w3, B_w2):
    def _A_ref(q, k, v, shift_k, ssm_k, ssm_D):
        B, S, D = q.shape
        ks = shift_k.shape[-1]
        k_pad = _pad(k, ((0, 0), (ks - 1, 0), (0, 0)))
        k_shift = torch.zeros_like(k)
        for t in range(ks):
            k_shift = k_shift + k_pad[:, t:t + S, :] * shift_k[:, ks - 1 - t][None, None, :]
        kv = k_shift * v
        L = 2 * S
        kv_pad = _pad(kv, ((0, 0), (0, S), (0, 0)))
        kf_pad = _pad(ssm_k, ((0, 0), (0, S)))
        kv_f = (lambda x, axes=(-2,-1): torch.fft.rfft2(x.float(), dim=axes))(kv_pad[:, None, :, :], axes=(1, 2))
        kf_f = (lambda x, axes=(-2,-1): torch.fft.rfft2(x.float(), dim=axes))(kf_pad[:, None, :], axes=(1, 2))
        kf_f = (lambda x, *d: x.permute(*d))(kf_f, 1, 2, 0)
        y_f = kv_f * kf_f[None, :, :, :]
        y = (lambda x, s, axes=(-2,-1): torch.fft.irfft2(x, s=s, dim=axes).to(torch.bfloat16))(y_f, (1, L), axes=(1, 2))[:, 0, :S, :]
        y = y + kv * ssm_D[None, None, :]
        return q * y

    def _B_ref(x, w1, w3, w2):
        gate = torch.einsum("bsd,df->bsf", x, w1)
        up = torch.einsum("bsd,df->bsf", x, w3)
        h = _silu(gate) * up
        out = torch.einsum("bsf,fd->bsd", h, w2)
        return out

    x = A_q
    xn = _layernorm(x, axis=-1)
    return x + _A_ref(xn, A_k, A_v, A_shift_k, A_ssm_k, A_ssm_D) + _B_ref(xn, B_w1, B_w3, B_w2)
```

```python
import sys

S, D, F = 2048, 576, 4608
XN_OFF, XN_SZ = 0, S * D * 2
KVT_OFF, KVT_SZ = XN_OFF + XN_SZ, S * D * 2
YT_OFF, YT_SZ = KVT_OFF + KVT_SZ, S * D * 2
H_OFF, H_SZ = YT_OFF + YT_SZ, S * F * 2
P_OFF, P_SZ = H_OFF + H_SZ, 4 * S * D * 4
PSPLIT = S * D * 4

KA = dict(q=0, k=8, v=16, shk=24, ssk=32, ssd=40, bx=48, w1=56, w3=64, w2=72, out=80, dbg=88, ws=96)


class E:
    def __init__(self):
        self.l = []
        self.vm = []
        self.lg = []

    def __call__(self, s):
        self.l.append("  " + s)

    def lab(self, s):
        self.l.append(s + ":")

    def c(self, s):
        self.l.append("  ; " + s)

    def vmi(self, s, tag):
        self(s)
        self.vm.append(tag)

    def vmw(self, tag):
        idx = [i for i, t in enumerate(self.vm) if t == tag]
        if not idx:
            return
        last = idx[-1]
        n = len(self.vm) - 1 - last
        assert n <= 63, n
        self(f"s_waitcnt vmcnt({n})")
        self.vm = self.vm[last + 1:]

    def vmall(self):
        self("s_waitcnt vmcnt(0)")
        self.vm = []

    def lgi(self, s, tag):
        self(s)
        self.lg.append(tag)
        assert len(self.lg) <= 15, "too many lgkm outstanding"

    def lgw(self, tag):
        idx = [i for i, t in enumerate(self.lg) if t == tag]
        if not idx:
            return
        last = idx[-1]
        n = len(self.lg) - 1 - last
        assert n <= 15, n
        self(f"s_waitcnt lgkmcnt({n})")
        self.lg = self.lg[last + 1:]

    def lgall(self):
        self("s_waitcnt lgkmcnt(0)")
        self.lg = []

    def text(self):
        return "\n".join(self.l) + "\n"


def srd(e, d, base, off, size):
    if off:
        e(f"s_add_u32 s{d}, s{base}, {off}")
        e(f"s_addc_u32 s{d+1}, s{base+1}, 0")
    else:
        e(f"s_mov_b32 s{d}, s{base}")
        e(f"s_mov_b32 s{d+1}, s{base+1}")
    e(f"s_mov_b32 s{d+2}, {size}")
    e(f"s_mov_b32 s{d+3}, 0x00020000")


def header(name):
    return f".text\n.globl {name}\n.p2align 8\n.type {name},@function\n{name}:\n"


def desc(name, vgpr, sgpr=102):
    acc = (vgpr + 3) // 4 * 4
    return f""".section .rodata,"a"
.p2align 6
.amdhsa_kernel {name}
  .amdhsa_next_free_vgpr {vgpr}
  .amdhsa_next_free_sgpr {sgpr}
  .amdhsa_accum_offset {acc}
  .amdhsa_group_segment_fixed_size 0
  .amdhsa_kernarg_size 104
  .amdhsa_user_sgpr_count 2
  .amdhsa_user_sgpr_kernarg_segment_ptr 1
  .amdhsa_system_sgpr_workgroup_id_x 1
.end_amdhsa_kernel
"""


def unpk(e, lo, hi, src):
    e(f"v_lshlrev_b32 v{lo}, 16, v{src}")
    e(f"v_and_b32 v{hi}, 0xffff0000, v{src}")


def rnd1(e, r, tmp):
    e(f"v_cvt_pk_bf16_f32 v{tmp}, v{r}, v{r}")
    e(f"v_lshlrev_b32 v{r}, 16, v{tmp}")


def rnd2(e, a, b, tmp):
    e(f"v_cvt_pk_bf16_f32 v{tmp}, v{a}, v{b}")
    unpk(e, a, b, tmp)


def gen_prep():
    e = E()
    name = "prep_kernel"
    e("s_cmp_ge_u32 s2, 224")
    e("s_cbranch_scc1 prep_end")
    e(f"s_load_dwordx4 s[4:7], s[0:1], {KA['q']}")
    e(f"s_load_dwordx4 s[8:11], s[0:1], {KA['v']}")
    e(f"s_load_dwordx2 s[12:13], s[0:1], {KA['ws']}")
    e("v_lshrrev_b32 v1, 6, v0")
    e("v_and_b32 v2, 63, v0")
    e("s_nop 0")
    e("v_readfirstlane_b32 s3, v1")
    e("s_waitcnt lgkmcnt(0)")
    e("s_cmp_ge_u32 s2, 128")
    e("s_cbranch_scc1 prep_kv")
    srd(e, 16, 4, 0, S * D * 2)
    srd(e, 20, 12, XN_OFF, XN_SZ)
    e("v_lshrrev_b32 v3, 4, v2")
    e("v_and_b32 v4, 15, v2")
    e("s_lshl_b32 s14, s2, 4")
    e("v_add_u32 v5, s14, v4")
    e("s_movk_i32 s15, 1152")
    e("v_mul_lo_u32 v5, v5, s15")
    e("v_lshl_add_u32 v5, v3, 3, v5")
    e("s_mul_i32 s15, s3, 192")
    for t in range(3):
        e(f"buffer_load_dwordx2 v[{8+4*t}:{9+4*t}], v5, s[16:19], s15 offen offset:{64*t}")
        e(f"buffer_load_dwordx2 v[{10+4*t}:{11+4*t}], v5, s[16:19], s15 offen offset:{64*t+32}")
    e("v_xor_b32 v6, 16, v2")
    e("v_lshlrev_b32 v6, 2, v6")
    e("v_xor_b32 v7, 32, v2")
    e("v_lshlrev_b32 v7, 2, v7")
    e("s_lshl_b32 s15, s3, 6")
    e("v_lshlrev_b32 v60, 2, v4")
    e("v_add_u32 v61, s15, v60")
    e("s_waitcnt vmcnt(0)")
    for i in range(12):
        unpk(e, 24 + 2 * i, 25 + 2 * i, 8 + i)

    def reduce_rows(acc, ldsoff):
        e(f"ds_bpermute_b32 v50, v6, v{acc}")
        e("s_waitcnt lgkmcnt(0)")
        e(f"v_add_f32 v{acc}, v{acc}, v50")
        e(f"ds_bpermute_b32 v50, v7, v{acc}")
        e("s_waitcnt lgkmcnt(0)")
        e(f"v_add_f32 v{acc}, v{acc}, v50")
        e(f"ds_write_b32 v61, v{acc} offset:{ldsoff}")
        e("s_waitcnt lgkmcnt(0)")
        e("s_barrier")
        for j in range(6):
            e(f"ds_read_b32 v{52+j}, v60 offset:{ldsoff+64*j}")
        e("s_waitcnt lgkmcnt(0)")
        e("v_add_f32 v52, v52, v53")
        e("v_add_f32 v54, v54, v55")
        e("v_add_f32 v56, v56, v57")
        e("v_add_f32 v52, v52, v54")
        e(f"v_add_f32 v{acc}, v52, v56")

    e("v_add_f32 v48, v24, v25")
    e("v_add_f32 v49, v26, v27")
    for i in range(28, 48, 2):
        e(f"v_add_f32 v48, v48, v{i}")
        e(f"v_add_f32 v49, v49, v{i+1}")
    e("v_add_f32 v48, v48, v49")
    reduce_rows(48, 0)
    e("v_mul_f32 v48, 0x3ae38e39, v48")
    e("v_mov_b32 v49, 0")
    e("v_mov_b32 v51, 0")
    for i in range(24, 48, 2):
        e(f"v_sub_f32 v58, v{i}, v48")
        e(f"v_sub_f32 v59, v{i+1}, v48")
        e("v_fma_f32 v49, v58, v58, v49")
        e("v_fma_f32 v51, v59, v59, v51")
    e("v_add_f32 v49, v49, v51")
    reduce_rows(49, 512)
    e("v_mul_f32 v49, 0x3ae38e39, v49")
    rnd1(e, 49, 50)
    e("v_add_f32 v49, 0x3727c5ac, v49")
    rnd1(e, 49, 50)
    e("v_sqrt_f32 v49, v49")
    e("s_nop 0")
    rnd1(e, 49, 50)
    e("v_rcp_f32 v49, v49")
    rnd1(e, 48, 50)
    for i in range(12):
        a, b = 24 + 2 * i, 25 + 2 * i
        e(f"v_sub_f32 v{a}, v{a}, v48")
        e(f"v_sub_f32 v{b}, v{b}, v48")
        rnd2(e, a, b, 50)
        e(f"v_mul_f32 v{a}, v{a}, v49")
        e(f"v_mul_f32 v{b}, v{b}, v49")
        e(f"v_cvt_pk_bf16_f32 v{8+i}, v{a}, v{b}")
    e("s_mul_i32 s14, s2, 18")
    e("s_mul_i32 s15, s3, 3")
    e("s_add_u32 s14, s14, s15")
    e("s_lshl_b32 s14, s14, 10")
    e("v_lshlrev_b32 v5, 4, v2")
    for t in range(3):
        e(f"buffer_store_dwordx4 v[{8+4*t}:{11+4*t}], v5, s[20:23], s14 offen offset:{1024*t}")
    e("s_endpgm")

    e.lab("prep_kv")
    srd(e, 16, 6, 0, S * D * 2)
    srd(e, 20, 8, 0, S * D * 2)
    srd(e, 24, 10, 0, D * 4 * 2)
    srd(e, 28, 12, KVT_OFF, KVT_SZ)
    e("s_sub_u32 s14, s2, 128")
    e("s_mul_i32 s14, s14, 6")
    e("s_add_u32 s14, s14, s3")
    e("s_mul_i32 s15, s14, 7282")
    e("s_lshr_b32 s15, s15, 16")
    e("s_mul_i32 s33, s15, 9")
    e("s_sub_u32 s14, s14, s33")
    e("v_lshrrev_b32 v3, 5, v2")
    e("v_and_b32 v4, 31, v2")
    e("s_lshl_b32 s33, s15, 5")
    e("v_lshlrev_b32 v5, 4, v3")
    e("v_add_u32 v5, s33, v5")
    e("s_lshl_b32 s33, s14, 5")
    e("v_add_u32 v6, s33, v4")
    e("s_movk_i32 s34, 1152")
    e("v_mul_lo_u32 v7, v5, s34")
    e("v_lshl_add_u32 v7, v6, 2, v7")
    for j in range(6):
        e(f"s_movk_i32 s{40+j}, {3456*j}")
    KR, VR = 16, 40
    for i in range(3):
        e(f"v_subrev_u32 v9, {1152*(3-i)}, v7")
        e(f"buffer_load_dword v{KR+i}, v9, s[16:19], 0 offen")
    for i in range(16):
        e(f"buffer_load_dword v{KR+3+i}, v7, s[16:19], s{40+i//3} offen offset:{1152*(i%3)}")
    e("v_lshlrev_b32 v9, 4, v6")
    e("buffer_load_dwordx4 v[60:63], v9, s[24:27], 0 offen")
    for i in range(16):
        e(f"buffer_load_dword v{VR+i}, v7, s[20:23], s{40+i//3} offen offset:{1152*(i%3)}")
    e("v_sub_u32 v10, 2032, v5")
    e("v_and_b32 v11, 16, v10")
    e("v_and_b32 v10, 0xffffffe0, v10")
    e("v_lshrrev_b32 v11, 2, v11")
    e("v_add_u32 v10, v10, v11")
    e("v_lshlrev_b32 v10, 1, v10")
    e("v_lshl_add_u32 v10, v6, 13, v10")
    e("s_mov_b32 s36, 0x05040100")
    e("s_mov_b32 s37, 0x07060302")
    e("s_waitcnt vmcnt(16)")
    unpk(e, 64, 65, 60)
    unpk(e, 66, 67, 61)
    unpk(e, 68, 69, 62)
    unpk(e, 70, 71, 63)
    for i in range(19):
        unpk(e, 72 + i, 96 + i, KR + i)
    e("s_waitcnt vmcnt(0)")
    for r in range(16):
        for t in range(4):
            e(f"v_mul_f32 v120, v{72+r+t}, v{64+3-t}")
            e(f"v_mul_f32 v121, v{96+r+t}, v{68+3-t}")
            if t == 0:
                e("v_cvt_pk_bf16_f32 v124, v120, v121")
                unpk(e, 122, 123, 124)
            else:
                rnd2(e, 120, 121, 124)
                e("v_add_f32 v122, v122, v120")
                e("v_add_f32 v123, v123, v121")
                rnd2(e, 122, 123, 124)
        unpk(e, 120, 121, VR + r)
        e("v_mul_f32 v122, v122, v120")
        e("v_mul_f32 v123, v123, v121")
        e(f"v_cvt_pk_bf16_f32 v{VR+r}, v122, v123")
    for gp in range(4):
        r0, r1, r2, r3 = [15 - 4 * gp - j for j in range(4)]
        b = 72 + 4 * gp
        e(f"v_perm_b32 v{b}, v{VR+r1}, v{VR+r0}, s36")
        e(f"v_perm_b32 v{b+1}, v{VR+r3}, v{VR+r2}, s36")
        e(f"v_perm_b32 v{b+2}, v{VR+r1}, v{VR+r0}, s37")
        e(f"v_perm_b32 v{b+3}, v{VR+r3}, v{VR+r2}, s37")
    e("v_add_u32 v11, 4096, v10")
    for gp in range(4):
        b = 72 + 4 * gp
        e(f"buffer_store_dwordx2 v[{b}:{b+1}], v10, s[28:31], 0 offen offset:{16*gp}")
        e(f"buffer_store_dwordx2 v[{b+2}:{b+3}], v11, s[28:31], 0 offen offset:{16*gp}")
    e.lab("prep_end")
    e("s_endpgm")
    return header(name) + e.text(), desc(name, 128)


G1_STAGE = 36864


def gen_gemm1():
    e = E()
    name = "gemm1_kernel"
    ACC = 112
    XB = 16
    WR = 40
    NWR = 8
    DEPTH = 6
    VDMA = 72
    VX0, VX1 = 77, 78
    VW = 80
    def acc(mm, t, rt):
        return ACC + ((mm * 9 + t) * 2 + rt) * 4

    e("s_cmp_ge_u32 s2, 256")
    e("s_cbranch_scc1 g1_end")
    e(f"s_load_dwordx4 s[4:7], s[0:1], {KA['w1']}")
    e(f"s_load_dwordx2 s[20:21], s[0:1], {KA['ws']}")
    e("v_lshrrev_b32 v1, 6, v0")
    e("v_and_b32 v2, 63, v0")
    e("s_nop 0")
    e("v_readfirstlane_b32 s3, v1")
    e("s_and_b32 s22, s2, 7")
    e("s_lshl_b32 s22, s22, 2")
    e("s_lshr_b32 s23, s2, 3")
    e("s_and_b32 s23, s23, 3")
    e("s_add_u32 s22, s22, s23")
    e("s_lshr_b32 s23, s2, 5")
    e("s_waitcnt lgkmcnt(0)")
    e("s_cmp_ge_u32 s3, 4")
    e("s_cselect_b32 s8, s6, s4")
    e("s_cselect_b32 s9, s7, s5")
    e(f"s_mov_b32 s10, {D*F*2}")
    e("s_mov_b32 s11, 0x00020000")
    srd(e, 12, 20, XN_OFF, XN_SZ)
    srd(e, 16, 20, H_OFF, H_SZ)
    e("s_and_b32 s24, s3, 3")
    e("s_mul_i32 s24, s24, 288")
    e("s_mul_i32 s25, s22, 288")
    e("s_movk_i32 s26, 3641")
    e("s_movk_i32 s27, 9216")
    for q in range(5):
        e(f"v_add_u32 v3, {64*q}, v2")
        e("v_add_u32 v3, s24, v3")
        e("v_mul_lo_u32 v4, v3, s26")
        e("v_lshrrev_b32 v4, 16, v4")
        e("v_mul_u32_u24 v5, 18, v4")
        e("v_sub_u32 v5, v3, v5")
        e("v_mul_lo_u32 v4, v4, s27")
        e("v_lshl_add_u32 v4, v5, 4, v4")
        e(f"v_add_u32 v{VDMA+q}, s25, v4")
    e("s_mul_i32 s28, s3, 4608")
    for i in range(9):
        e(f"s_mov_b32 s{40+i}, {i*589824}")
    for i in range(5):
        e(f"s_movk_i32 s{50+i}, {i*4096}")
    e("s_lshl_b32 s24, s23, 4")
    e("s_lshl_b32 s25, s3, 1")
    e("s_add_u32 s24, s24, s25")
    e("s_mul_i32 s25, s24, 18432")
    e(f"v_lshlrev_b32 v{VX0}, 4, v2")
    e(f"v_add_u32 v{VX0}, s25, v{VX0}")
    e(f"v_add_u32 v{VX1}, 18432, v{VX0}")
    e("v_lshrrev_b32 v3, 2, v2")
    e("v_mul_u32_u24 v3, 288, v3")
    e("v_and_b32 v4, 3, v2")
    e("v_lshl_add_u32 v3, v4, 3, v3")
    for sl in range(4):
        e(f"v_add_u32 v{VW+sl}, {sl*G1_STAGE}, v3")

    def dma(stage):
        sl = stage % 4
        for q in range(5):
            e(f"s_add_u32 m0, s28, {sl*G1_STAGE + 1024*q}")
            if q == 4:
                e("s_mov_b32 exec_hi, 0")
            else:
                e("s_nop 0")
            e.vmi(f"buffer_load_dwordx4 v{VDMA+q}, s[8:11], s{40+stage} offen lds", ("dma", stage))
            if q == 4:
                e("s_mov_b32 exec_hi, -1")

    def xload(s):
        b = XB + (s % 3) * 8
        e.vmi(f"buffer_load_dwordx4 v[{b}:{b+3}], v{VX0}, s[12:15], s{50+s//4} offen offset:{1024*(s%4)}", ("x", s))
        e.vmi(f"buffer_load_dwordx4 v[{b+4}:{b+7}], v{VX1}, s[12:15], s{50+s//4} offen offset:{1024*(s%4)}", ("x", s))

    NT = 18
    def wread(n):
        s, j = divmod(n, NT)
        t, mm = divmod(j, 2)
        sl = (s // 2) % 4
        p = s % 2
        r = WR + (n % NWR) * 4
        for h in range(2):
            off = mm * 18432 + (32 * p + 16 * h) * 288 + 32 * t
            e.lgi(f"ds_read_b64_tr_b16 v[{r+2*h}:{r+2*h+1}], v{VW+sl} offset:{off}", ("w", n))

    xload(0)
    dma(0)
    xload(1)
    dma(1)
    xload(2)
    dma(2)
    e.vmw(("dma", 0))
    e("s_barrier")
    for n in range(DEPTH):
        wread(n)
    total = 18 * NT
    for n in range(total):
        s, j = divmod(n, NT)
        t, mm = divmod(j, 2)
        if j == 0:
            e.vmw(("x", s))
        if n + DEPTH < total:
            wread(n + DEPTH)
        e.lgw(("w", n))
        r = WR + (n % NWR) * 4
        xb = XB + (s % 3) * 8
        for rt in range(2):
            a = acc(mm, t, rt)
            c = "0" if s == 0 else f"v[{a}:{a+3}]"
            e(f"v_mfma_f32_16x16x32_bf16 v[{a}:{a+3}], v[{r}:{r+3}], v[{xb+4*rt}:{xb+4*rt+3}], {c}")
        if j == NT - 1:
            if s + 3 < 18:
                xload(s + 3)
            if s % 2 == 0:
                i = s // 2
                if i + 1 < 9:
                    e.vmw(("dma", i + 1))
                    e("s_barrier")
                    if i + 3 < 9:
                        dma(i + 3)
    e("s_nop 7")
    e("s_nop 3")
    e("v_lshlrev_b32 v3, 4, v2")
    e("s_mul_i32 s25, s24, 147456")
    e("s_mul_i32 s26, s22, 9")
    e("s_mov_b32 s30, 0xbfb8aa3b")
    for t in range(9):
        e(f"s_add_u32 s27, s26, {t}")
        e("s_lshr_b32 s29, s27, 1")
        e("s_lshl_b32 s29, s29, 10")
        e("s_and_b32 s27, s27, 1")
        e("s_lshl_b32 s27, s27, 3")
        e("s_add_u32 s29, s29, s27")
        e("s_add_u32 s29, s29, s25")
        e("s_add_u32 s31, s29, 147456")
        for rt in range(2):
            g, u = acc(0, t, rt), acc(1, t, rt)
            T0 = 16 + 8 * rt
            for i in range(4):
                e(f"v_mul_f32 v{T0+i}, s30, v{g+i}")
            for i in range(4):
                e(f"v_exp_f32 v{T0+i}, v{T0+i}")
            for i in range(4):
                e(f"v_add_f32 v{T0+i}, 1.0, v{T0+i}")
            for i in range(4):
                e(f"v_rcp_f32 v{T0+i}, v{T0+i}")
            for i in range(4):
                e(f"v_mul_f32 v{g+i}, v{g+i}, v{u+i}")
            for i in range(4):
                e(f"v_mul_f32 v{g+i}, v{g+i}, v{T0+i}")
            e(f"v_cvt_pk_bf16_f32 v{u}, v{g}, v{g+1}")
            e(f"v_cvt_pk_bf16_f32 v{u+1}, v{g+2}, v{g+3}")
            e(f"buffer_store_dwordx2 v[{u}:{u+1}], v3, s[16:19], s{29 if rt == 0 else 31} offen")
    e.lab("g1_end")
    e("s_endpgm")
    return header(name) + e.text(), desc(name, 256)


G2_STAGE = 18432
CV_COPY = 4288
CV_U = 4 * CV_COPY
CV_WAVE = CV_U + 47 * 144


def gen_gemm2():
    e = E()
    name = "gemm2_kernel"
    ACC = 112
    XB = 16
    WR = 64
    NWR = 8
    DEPTH = 6
    VDMA = 96
    VX = 101
    VW = 105
    def acc(t, rt):
        return ACC + (t * 4 + rt) * 4

    e("s_cmp_ge_u32 s2, 448")
    e("s_cbranch_scc1 g2_end")
    e(f"s_load_dwordx2 s[20:21], s[0:1], {KA['ws']}")
    e(f"s_load_dwordx2 s[4:5], s[0:1], {KA['w2']}")
    e(f"s_load_dwordx4 s[60:63], s[0:1], {KA['ssk']}")
    e("v_lshrrev_b32 v1, 6, v0")
    e("v_and_b32 v2, 63, v0")
    e("s_nop 0")
    e("v_readfirstlane_b32 s3, v1")
    e("s_cmp_ge_u32 s2, 256")
    e("s_cbranch_scc1 conv_start")
    e("s_and_b32 s22, s2, 3")
    e("s_lshr_b32 s23, s2, 2")
    e("s_and_b32 s23, s23, 1")
    e("s_lshl_b32 s23, s23, 3")
    e("s_lshr_b32 s24, s2, 5")
    e("s_add_u32 s23, s23, s24")
    e("s_lshr_b32 s24, s2, 3")
    e("s_and_b32 s24, s24, 3")
    e("s_waitcnt lgkmcnt(0)")
    srd(e, 8, 4, 0, F * D * 2)
    srd(e, 12, 20, H_OFF, H_SZ)
    srd(e, 16, 20, P_OFF, P_SZ)
    e("s_mul_i32 s25, s3, 288")
    e("s_mul_i32 s26, s22, 1327104")
    e("s_mul_i32 s27, s24, 288")
    e("s_add_u32 s26, s26, s27")
    e("s_movk_i32 s27, 3641")
    e("s_movk_i32 s29, 1152")
    for q in range(5):
        e(f"v_add_u32 v3, {64*q}, v2")
        e("v_add_u32 v3, s25, v3")
        e("v_mul_lo_u32 v4, v3, s27")
        e("v_lshrrev_b32 v4, 16, v4")
        e("v_mul_u32_u24 v5, 18, v4")
        e("v_sub_u32 v5, v3, v5")
        e("v_mul_lo_u32 v4, v4, s29")
        e("v_lshl_add_u32 v4, v5, 4, v4")
        e(f"v_add_u32 v{VDMA+q}, s26, v4")
    e("s_mul_i32 s28, s3, 4608")
    for i in range(18):
        e(f"s_mov_b32 s{30+i}, {i*64*1152}")
    e("s_and_b32 s25, s3, 1")
    e("s_lshr_b32 s26, s3, 1")
    e("s_lshl_b32 s27, s23, 3")
    e("s_lshl_b32 s29, s25, 2")
    e("s_add_u32 s27, s27, s29")
    e("s_mov_b32 s64, s27")
    e("s_mul_i32 s27, s27, 147456")
    e("s_mul_i32 s29, s22, 36")
    e("s_add_u32 s29, s29, s26")
    e("s_lshl_b32 s29, s29, 10")
    e("s_add_u32 s27, s27, s29")
    e(f"v_lshlrev_b32 v{VX}, 4, v2")
    e(f"v_add_u32 v{VX}, s27, v{VX}")
    for rt in range(1, 4):
        e(f"v_add_u32 v{VX+rt}, {147456*rt}, v{VX}")
    for i in range(9):
        e(f"s_mov_b32 s{48+i}, {i*4096}")
    e("v_lshrrev_b32 v3, 2, v2")
    e("s_lshl_b32 s29, s26, 5")
    e("v_add_u32 v3, s29, v3")
    e("v_mul_u32_u24 v3, 288, v3")
    e("v_and_b32 v4, 3, v2")
    e("v_lshl_add_u32 v3, v4, 3, v3")
    for sl in range(4):
        e(f"v_add_u32 v{VW+sl}, {sl*G2_STAGE}, v3")

    NS = 18
    def dma(stage):
        sl = stage % 4
        for q in range(5):
            e(f"s_add_u32 m0, s28, {sl*G2_STAGE + 1024*q}")
            if q == 4:
                e("s_mov_b32 exec_hi, 0")
            else:
                e("s_nop 0")
            e.vmi(f"buffer_load_dwordx4 v{VDMA+q}, s[8:11], s{30+stage} offen lds", ("dma", stage))
            if q == 4:
                e("s_mov_b32 exec_hi, -1")

    def xload(s):
        b = XB + (s % 3) * 16
        for rt in range(4):
            e.vmi(f"buffer_load_dwordx4 v[{b+4*rt}:{b+4*rt+3}], v{VX+rt}, s[12:15], s{48+s//2} offen offset:{2048*(s%2)}", ("x", s))

    NT = 9
    def wread(n):
        s, t = divmod(n, NT)
        sl = s % 4
        r = WR + (n % NWR) * 4
        for h in range(2):
            off = (16 * h) * 288 + 32 * t
            e.lgi(f"ds_read_b64_tr_b16 v[{r+2*h}:{r+2*h+1}], v{VW+sl} offset:{off}", ("w", n))

    xload(0)
    dma(0)
    xload(1)
    dma(1)
    xload(2)
    dma(2)
    e.vmw(("dma", 0))
    e("s_barrier")
    MID = 2
    for n in range(DEPTH):
        wread(n)
    total = NS * NT
    for n in range(total):
        s, t = divmod(n, NT)
        if t == 0:
            e.vmw(("x", s))
        if n + DEPTH < total:
            wread(n + DEPTH)
        e.lgw(("w", n))
        r = WR + (n % NWR) * 4
        xb = XB + (s % 3) * 16
        for rt in range(4):
            a = acc(t, rt)
            c = "0" if s == 0 else f"v[{a}:{a+3}]"
            e(f"v_mfma_f32_16x16x32_bf16 v[{a}:{a+3}], v[{r}:{r+3}], v[{xb+4*rt}:{xb+4*rt+3}], {c}")
        if t == MID:
            if s + 1 < NS:
                e.vmw(("dma", s + 1))
                e("s_barrier")
                if s + 3 < NS:
                    dma(s + 3)
        if t == NT - 1:
            if s + 3 < NS:
                xload(s + 3)
    e("s_nop 7")
    e("s_barrier")
    e("v_lshlrev_b32 v3, 4, v2")
    e("s_mul_i32 s27, s3, 18432")
    e("v_add_u32 v4, s27, v3")
    e("s_xor_b32 s27, s3, 2")
    e("s_mul_i32 s27, s27, 18432")
    e("v_add_u32 v5, s27, v3")
    e("s_cmp_eq_u32 s26, 0")
    e("s_cbranch_scc0 g2_kp1")
    for half, lab in ((0, None), (1, "g2_kp1")):
        if lab:
            e.lab(lab)
        keep = range(18) if half == 0 else range(18, 36)
        give = range(18, 36) if half == 0 else range(18)
        for i, tl in enumerate(give):
            a = ACC + tl * 4
            e(f"ds_write_b128 v4, v[{a}:{a+3}] offset:{1024*i}")
        e("s_waitcnt lgkmcnt(0)")
        e("s_barrier")
        e(f"s_mul_i32 s27, s22, {PSPLIT}")
        e("s_mul_i32 s29, s64, 36864")
        e("s_add_u32 s27, s27, s29")
        e("s_mul_i32 s29, s24, 9216")
        e("s_add_u32 s27, s27, s29")
        for grp in range(0, 18, 6):
            for i in range(grp, grp + 6):
                e(f"ds_read_b128 v[{16+4*(i-grp)}:{19+4*(i-grp)}], v5 offset:{1024*i}")
            for i in range(grp, grp + 6):
                tl = keep[i]
                t, rt = divmod(tl, 4)
                a = ACC + tl * 4
                e(f"s_waitcnt lgkmcnt({5-(i-grp)})")
                for k in range(4):
                    e(f"v_add_f32 v{a+k}, v{a+k}, v{16+4*(i-grp)+k}")
                e(f"s_add_u32 s29, s27, {rt*36864 + t*1024}")
                e(f"buffer_store_dwordx4 v[{a}:{a+3}], v3, s[16:19], s29 offen")
        e("s_endpgm")

    e.lab("conv_start")
    e.vm = []
    e.lg = []
    e("s_cmp_ge_u32 s3, 3")
    e("s_cbranch_scc1 g2_end")
    e("s_sub_u32 s22, s2, 256")
    e("s_mul_i32 s22, s22, 3")
    e("s_add_u32 s22, s22, s3")
    e("s_waitcnt lgkmcnt(0)")
    e("s_lshl_b32 s23, s22, 12")
    e("s_add_u32 s8, s60, s23")
    e("s_addc_u32 s9, s61, 0")
    e("s_movk_i32 s10, 4096")
    e("s_mov_b32 s11, 0x00020000")
    srd(e, 12, 20, KVT_OFF, KVT_SZ)
    srd(e, 16, 20, YT_OFF, YT_SZ)
    srd(e, 24, 62, 0, D * 2)
    e(f"s_mul_i32 s28, s3, {CV_WAVE}")
    e("v_lshlrev_b32 v3, 4, v2")
    for i in range(4):
        e(f"buffer_load_dwordx4 v[{16+4*i}:{19+4*i}], v3, s[12:15], s23 offen offset:{1024*i}")
    for c in range(4):
        for it in range(5):
            b = 32 + (c * 5 + it) * 4
            e(f"v_add_u32 v4, {1024*it + 2*c - 128}, v3")
            e(f"buffer_load_dwordx4 v[{b}:{b+3}], v4, s[8:11], 0 offen")
    e("v_mov_b32 v5, 1")
    e("v_mov_b32 v6, 0")
    e("v_cmp_le_u32 vcc, 1, v2")
    e("s_nop 1")
    e("v_cndmask_b32 v5, v5, 2, vcc")
    e("v_cndmask_b32 v6, v6, 1, vcc")
    e("v_cmp_le_u32 vcc, 3, v2")
    e("s_nop 1")
    e("v_cndmask_b32 v5, v5, 3, vcc")
    e("v_cndmask_b32 v6, v6, 3, vcc")
    e("v_sub_u32 v6, v2, v6")
    e("v_mov_b32 v9, 2047")
    e("v_cmp_le_u32 vcc, 6, v2")
    e("s_nop 1")
    e("v_cndmask_b32 v6, v6, v9, vcc")
    e("v_cmp_eq_u32 vcc, 6, v2")
    e("s_nop 1")
    e("v_cndmask_b32 v5, v5, 1, vcc")
    e("v_lshlrev_b32 v7, 1, v6")
    e("buffer_load_ushort v8, v7, s[8:11], 0 offen")
    e("s_lshl_b32 s29, s22, 1")
    e("v_mov_b32 v9, s29")
    e("buffer_load_ushort v10, v9, s[24:27], 0 offen")
    e(f"v_mul_u32_u24 v7, {CV_COPY-2}, v5")
    e("v_lshl_add_u32 v7, v6, 1, v7")
    e("v_add_u32 v7, 128, v7")
    e("v_add_u32 v7, s28, v7")
    e("v_lshrrev_b32 v11, 3, v2")
    e("v_mul_u32_u24 v11, 144, v11")
    e("v_and_b32 v12, 7, v2")
    e("v_lshl_add_u32 v11, v12, 4, v11")
    e("v_add_u32 v11, s28, v11")
    e("v_mov_b32 v112, 0")
    e("v_mov_b32 v113, 0")
    e("v_mov_b32 v114, 0")
    e("v_mov_b32 v115, 0")
    e("v_add_u32 v12, s28, v3")
    e(f"ds_write_b128 v12, v[112:115] offset:{CV_U + 32*144}")
    e(f"ds_write_b128 v12, v[112:115] offset:{CV_U + 32*144 + 1024}")
    e("s_mov_b64 exec, 0x7f")
    e(f"ds_write_b128 v12, v[112:115] offset:{CV_U + 32*144 + 2048}")
    e("s_mov_b64 exec, -1")
    e("s_waitcnt vmcnt(22)")
    for i in range(4):
        e(f"ds_write_b128 v11, v[{16+4*i}:{19+4*i}] offset:{CV_U + 1152*i}")
    for c in range(4):
        for it in range(5):
            b = 32 + (c * 5 + it) * 4
            e(f"s_waitcnt vmcnt({21 - (c*5+it)})")
            if it == 4:
                e("s_mov_b64 exec, 0x3ff")
            e(f"ds_write_b128 v12, v[{b}:{b+3}] offset:{c*CV_COPY + 1024*it}")
            if it == 4:
                e("s_mov_b64 exec, -1")
    e("s_waitcnt vmcnt(0) lgkmcnt(0)")
    e("s_mov_b64 exec, 0xff")
    e("ds_write_b16 v7, v8")
    e("s_mov_b64 exec, -1")
    e("v_lshlrev_b32 v10, 16, v10")
    e("v_lshrrev_b32 v3, 4, v2")
    e("v_and_b32 v4, 15, v2")
    e("v_add_u32 v5, 1, v4")
    e("v_and_b32 v6, 3, v5")
    e("v_lshrrev_b32 v5, 2, v5")
    e("v_add_u32 v5, v5, v3")
    e(f"v_mul_u32_u24 v6, {CV_COPY}, v6")
    e("v_lshl_add_u32 v5, v5, 3, v6")
    e("v_add_u32 v5, s28, v5")
    e("v_sub_u32 v6, 15, v4")
    e("v_mul_u32_u24 v6, 144, v6")
    e("v_lshl_add_u32 v6, v3, 4, v6")
    e("v_add_u32 v6, s28, v6")
    e("s_waitcnt lgkmcnt(0)")
    GR = 16
    BR = 52
    CA = 88
    def gread(idx):
        p = idx % 16
        e.lgi(f"ds_read_b64 v[{GR+2*p}:{GR+2*p+1}], v5 offset:{32*idx}", ("g", idx))
        if p == 0 and idx > 0:
            e.lgi(f"ds_read_b64 v[{GR+32}:{GR+33}], v5 offset:{32*idx}", ("g", idx))

    def bread(kb):
        q, p = divmod(kb, 2)
        for n in range(2):
            if n == 0 and kb >= 32:
                continue
            r = BR + ((kb % 4) * 2 + n) * 4
            off = CV_U + q * 144 + 64 * p + (2304 if n == 0 else 0)
            e.lgi(f"ds_read_b128 v[{r}:{r+3}], v6 offset:{off}", ("b", kb))

    for idx in range(3):
        gread(idx)
    def step_reads(kb):
        gread(2 * kb + 3)
        gread(2 * kb + 4)
        bread(kb)
    PF = 2
    for kb in range(PF):
        step_reads(kb)
    for kb in range(64):
        if kb + PF < 64:
            step_reads(kb + PF)
        e.lgw(("b", kb))
        for n in range(2):
            if n == 0 and kb >= 32:
                continue
            r = BR + ((kb % 4) * 2 + n) * 4
            for m in range(4):
                p = (2 * kb + m) % 16
                a = CA + (n * 4 + m) * 4
                c = "0" if kb == 0 else f"v[{a}:{a+3}]"
                e(f"v_mfma_f32_16x16x32_bf16 v[{a}:{a+3}], v[{GR+2*p}:{GR+2*p+3}], v[{r}:{r+3}], {c}")
    e("v_sub_u32 v7, 3, v3")
    e("v_sub_u32 v8, 15, v4")
    e("v_mul_u32_u24 v8, 144, v8")
    e("v_lshl_add_u32 v8, v7, 4, v8")
    e("v_add_u32 v8, s28, v8")
    for n in range(2):
        for m in range(4):
            off = CV_U + (2304 if n == 0 else 0) + 64 * (1 - (m >> 1)) + 8 * (1 - (m & 1))
            r = 16 + (n * 4 + m) * 2
            e(f"ds_read_b64 v[{r}:{r+1}], v8 offset:{off}")
    e("v_lshlrev_b32 v9, 7, v4")
    e("v_lshl_add_u32 v9, v3, 3, v9")
    e("s_waitcnt lgkmcnt(0)")
    e("s_nop 7")
    for n in range(2):
        for m in range(4):
            a = CA + (n * 4 + m) * 4
            r = 16 + (n * 4 + m) * 2
            unpk(e, 43, 42, r)
            unpk(e, 41, 40, r + 1)
            for i in range(4):
                e(f"v_mul_f32 v{40+i}, v{40+i}, v10")
            rnd2(e, 40, 41, 44)
            rnd2(e, 42, 43, 44)
            rnd2(e, a, a + 1, 44)
            rnd2(e, a + 2, a + 3, 44)
            for i in range(4):
                e(f"v_add_f32 v{a+i}, v{a+i}, v{40+i}")
            e(f"v_cvt_pk_bf16_f32 v{a}, v{a}, v{a+1}")
            e(f"v_cvt_pk_bf16_f32 v{a+1}, v{a+2}, v{a+3}")
            e(f"buffer_store_dwordx2 v[{a}:{a+1}], v9, s[16:19], s23 offen offset:{2048*n + 32*m}")
    e.lab("g2_end")
    e("s_endpgm")
    return header(name) + e.text(), desc(name, 256)


def gen_final():
    e = E()
    name = "final_kernel"
    e("s_cmp_ge_u32 s2, 576")
    e("s_cbranch_scc1 fin_end")
    e(f"s_load_dwordx2 s[4:5], s[0:1], {KA['q']}")
    e(f"s_load_dwordx2 s[6:7], s[0:1], {KA['out']}")
    e(f"s_load_dwordx2 s[20:21], s[0:1], {KA['ws']}")
    e("v_lshrrev_b32 v1, 6, v0")
    e("v_and_b32 v2, 63, v0")
    e("s_nop 0")
    e("v_readfirstlane_b32 s3, v1")
    e("s_lshl_b32 s22, s2, 2")
    e("s_add_u32 s22, s22, s3")
    e("s_mul_i32 s23, s22, 3641")
    e("s_lshr_b32 s23, s23, 16")
    e("s_mul_i32 s24, s23, 18")
    e("s_sub_u32 s24, s22, s24")
    e("s_waitcnt lgkmcnt(0)")
    srd(e, 8, 4, 0, S * D * 2)
    srd(e, 12, 6, 0, S * D * 2)
    srd(e, 16, 20, P_OFF, P_SZ)
    srd(e, 28, 20, XN_OFF, XN_SZ)
    srd(e, 32, 20, YT_OFF, YT_SZ)
    e("v_lshlrev_b32 v3, 4, v2")
    e("v_lshrrev_b32 v4, 4, v2")
    e("v_and_b32 v5, 15, v2")
    e("s_lshl_b32 s25, s22, 11")
    for sp in range(4):
        e(f"s_add_u32 s26, s25, {sp*PSPLIT}")
        for h in range(2):
            b = 16 + (sp * 2 + h) * 4
            e(f"buffer_load_dwordx4 v[{b}:{b+3}], v3, s[16:19], s26 offen offset:{1024*h}")
    e("s_lshl_b32 s26, s22, 10")
    e("buffer_load_dwordx4 v[48:51], v3, s[28:31], s26 offen")
    e("s_lshl_b32 s26, s23, 4")
    e("v_add_u32 v6, s26, v5")
    e("s_movk_i32 s27, 1152")
    e("v_mul_lo_u32 v7, v6, s27")
    e("v_lshl_add_u32 v7, v4, 3, v7")
    e("s_lshl_b32 s27, s24, 6")
    e("buffer_load_dwordx2 v[52:53], v7, s[8:11], s27 offen")
    e("buffer_load_dwordx2 v[54:55], v7, s[8:11], s27 offen offset:32")
    e("v_lshlrev_b32 v8, 14, v4")
    e("v_lshl_add_u32 v8, v6, 1, v8")
    e("s_lshl_b32 s36, s24, 17")
    for h in range(2):
        for r in range(4):
            e(f"s_add_u32 s37, s36, {(16*h + r)*4096}")
            e(f"buffer_load_ushort v{56+4*h+r}, v8, s[32:35], s37 offen")
    e("s_waitcnt vmcnt(0)")
    for h in range(2):
        for i in range(4):
            a = 16 + h * 4 + i
            e(f"v_add_f32 v{a}, v{a}, v{a+8}")
            e(f"v_add_f32 v{a+16}, v{a+16}, v{a+24}")
            e(f"v_add_f32 v{a}, v{a}, v{a+16}")
        b = 16 + h * 4
        rnd2(e, b, b + 1, 10)
        rnd2(e, b + 2, b + 3, 10)
        unpk(e, 64, 65, 48 + 2 * h)
        unpk(e, 66, 67, 49 + 2 * h)
        unpk(e, 68, 69, 52 + 2 * h)
        unpk(e, 70, 71, 53 + 2 * h)
        for i in range(4):
            e(f"v_lshlrev_b32 v{56+4*h+i}, 16, v{56+4*h+i}")
            e(f"v_mul_f32 v{64+i}, v{64+i}, v{56+4*h+i}")
        rnd2(e, 64, 65, 10)
        rnd2(e, 66, 67, 10)
        for i in range(4):
            e(f"v_add_f32 v{64+i}, v{64+i}, v{68+i}")
        rnd2(e, 64, 65, 10)
        rnd2(e, 66, 67, 10)
        for i in range(4):
            e(f"v_add_f32 v{64+i}, v{64+i}, v{b+i}")
        e(f"v_cvt_pk_bf16_f32 v{72+2*h}, v64, v65")
        e(f"v_cvt_pk_bf16_f32 v{73+2*h}, v66, v67")
        e(f"buffer_store_dwordx2 v[{72+2*h}:{73+2*h}], v7, s[12:15], s27 offen offset:{32*h}")
    e.lab("fin_end")
    e("s_endpgm")
    return header(name) + e.text(), desc(name, 80)


def main():
    out = sys.argv[1] if len(sys.argv) > 1 else "parallel_sum__ssm_conv_h3__glu_gated_swiglu__prompt.s"
    parts = [gen_prep(), gen_gemm1(), gen_gemm2(), gen_final()]
    s = """; parallel_sum(ssm_conv_h3, glu_gated_swiglu): 4-launch pipeline, generated by dev/gen.py
; @launch kernel=prep_kernel grid=(224,1,1) block=(384,1,1) lds=1024
; @launch kernel=gemm1_kernel grid=(256,1,1) block=(512,1,1) lds=147456
; @launch kernel=gemm2_kernel grid=(448,1,1) block=(256,1,1) lds=81920
; @launch kernel=final_kernel grid=(576,1,1) block=(256,1,1) lds=0
.amdgcn_target "amdgcn-amd-amdhsa--gfx950"
"""
    for t, d in parts:
        s += t
    for t, d in parts:
        s += d
    open(out, "w").write(s)


if __name__ == "__main__":
    main()
```
